```python
import torch

def _softmax(x, axis=-1):
    return torch.softmax(x, dim=axis)
def _gelu(x):
    return torch.nn.functional.gelu(x, approximate="tanh")
def _silu(x):
    return torch.nn.functional.silu(x)
def _sigmoid(x):
    return torch.sigmoid(x)
def _layernorm(x, axis=-1, eps=1e-5):
    m = x.mean(dim=axis, keepdim=True)
    v = x.var(dim=axis, keepdim=True, unbiased=False)
    return (x - m) / torch.sqrt(v + eps)
def _scatter_add(tgt, idx, src, axis=0):
    return tgt.clone().index_add_(axis, idx, src)
def _segment_sum(src, seg, n):
    out = torch.zeros((n,) + src.shape[1:], dtype=src.dtype)
    return out.index_add_(0, seg, src)
def _pad(x, pw):
    flat = tuple(v for pair in reversed(pw) for v in pair)
    return torch.nn.functional.pad(x, flat)

kernel_name = 'parallel_sum__sliding_block_cached__dense_activation_gelu__decode'

def setup_inputs():

    _w = (lambda a: (lambda t: t.to(torch.bfloat16) if t.is_floating_point() else t)(torch.as_tensor(a)))
    def _A_setup():
        B, Sq, D = 8, 1, 512
        Hq, Hkv, Sk, Dh = 32, 8, 4096, 128
        assert Hq % Hkv == 0, (Hq, Hkv)
        return {
            "x": _w((lambda *s: torch.randn(*s, dtype=torch.bfloat16) * 0.05)(B, Sq, D)),
            "k_cache": _w((lambda *s: torch.randn(*s, dtype=torch.bfloat16) * 3.2)(B, Hkv, Sk, Dh)),
            "v_cache": _w((lambda *s: torch.randn(*s, dtype=torch.bfloat16) * 0.8)(B, Hkv, Sk, Dh)),
            "wq": _w((lambda *s: torch.randn(*s, dtype=torch.bfloat16) * 3.2)(D, Hq * Dh) * (D ** -0.5)),
            "wo": _w((lambda *s: torch.randn(*s, dtype=torch.bfloat16) * 0.8)(Hq * Dh, D) * ((Hq * Dh) ** -0.5)),
        }
    _A_in = _A_setup()

    def _B_setup():
        B, S, D, F = 8, 1, 512, 1792
        return {
            "x": _w((lambda *s: torch.randn(*s, dtype=torch.bfloat16) * 0.05)(B, S, D)),
            "w1": _w((lambda *s: torch.randn(*s, dtype=torch.bfloat16) * 3.2)(D, F) * (D ** -0.5)),
            "b1": _w((lambda *s: torch.randn(*s, dtype=torch.bfloat16) * 3.2)(F) * 0.01),
            "w2": _w((lambda *s: torch.randn(*s, dtype=torch.bfloat16) * 0.4)(F, D) * (F ** -0.5)),
            "b2": _w((lambda *s: torch.randn(*s, dtype=torch.bfloat16) * 0.4)(D) * 0.01),
        }
    _B_in = _B_setup()

    return {
        "A_x": _A_in["x"],
        "A_k_cache": _A_in["k_cache"],
        "A_v_cache": _A_in["v_cache"],
        "A_wq": _A_in["wq"],
        "A_wo": _A_in["wo"],
        "B_x": _B_in["x"],
        "B_w1": _B_in["w1"],
        "B_b1": _B_in["b1"],
        "B_w2": _B_in["w2"],
        "B_b2": _B_in["b2"],
    }

def reference(A_x, A_k_cache, A_v_cache, A_wq, A_wo, B_x, B_w1, B_b1, B_w2, B_b2):
    def _A_ref(x, k_cache, v_cache, wq, wo):
        B, Sq, D = x.shape
        Hq, Dh = 32, 128
        Hkv, Sk = k_cache.shape[1], k_cache.shape[2]
        W = min(4096, max(256, Sk // 4))
        rep = Hq // Hkv
        q = (lambda x, *d: x.permute(*d))((x @ wq).reshape(B, Sq, Hq, Dh), 0, 2, 1, 3)
        k = (lambda x, n, axis: torch.repeat_interleave(x, n, dim=axis))(k_cache[:, :, Sk - W:, :], rep, axis=1)
        v = (lambda x, n, axis: torch.repeat_interleave(x, n, dim=axis))(v_cache[:, :, Sk - W:, :], rep, axis=1)
        scores = torch.einsum("bhqd,bhkd->bhqk", q, k) * (Dh ** -0.5)
        p = _softmax(scores, axis=-1)
        o = torch.einsum("bhqk,bhkd->bhqd", p, v)
        return (lambda x, *d: x.permute(*d))(o, 0, 2, 1, 3).reshape(B, Sq, Hq * Dh) @ wo

    def _B_ref(x, w1, b1, w2, b2):
        h = torch.einsum("bsd,df->bsf", x, w1) + b1
        h = _gelu(h)
        return torch.einsum("bsf,fd->bsd", h, w2) + b2

    x = A_x
    xn = _layernorm(x, axis=-1)
    return x + _A_ref(xn, A_k_cache, A_v_cache, A_wq, A_wo) + _B_ref(xn, B_w1, B_b1, B_w2, B_b2)
```

```python
import sys

NAME = "parallel_sum__sliding_block_cached__dense_activation_gelu__decode"
S = 8
L = 1024 // S

Q_OFF = 0
H_OFF = 0x10000
ML_OFF = 0x20000
OP_OFF = 0x40000
PART_OFF = 0x200000

out = []
def e(s=""):
    out.append(s)

def srd(dst, ptr, nbytes):
    e(f"    s_mov_b32 s{dst}, s{ptr}")
    e(f"    s_mov_b32 s{dst+1}, s{ptr+1}")
    e(f"    s_mov_b32 s{dst+2}, {nbytes}")
    e(f"    s_mov_b32 s{dst+3}, 0x00020000")

def dpp_reduce(op, v, sdst):
    e(f"    s_nop 1")
    for m in ("row_shr:1 row_mask:0xf", "row_shr:2 row_mask:0xf", "row_shr:4 row_mask:0xf", "row_shr:8 row_mask:0xf",
              "row_bcast:15 row_mask:0xa", "row_bcast:31 row_mask:0xc"):
        e(f"    {op}_dpp v{v}, v{v}, v{v} {m} bank_mask:0xf")
        e(f"    s_nop 1")
    e(f"    v_readlane_b32 s{sdst}, v{v}, 63")

def bf16r(v, tmp=None):
    e(f"    v_cvt_pk_bf16_f32 v{v}, v{v}, v{v}")
    e(f"    v_lshlrev_b32 v{v}, 16, v{v}")

def kernel_header(name):
    e(f".globl {name}")
    e(f".p2align 8")
    e(f".type {name},@function")
    e(f"{name}:")

def kd(name, vgpr, lds=0):
    acc = (vgpr + 3) // 4 * 4
    e(f".amdhsa_kernel {name}")
    e(f"  .amdhsa_next_free_vgpr {vgpr}")
    e(f"  .amdhsa_next_free_sgpr 64")
    e(f"  .amdhsa_accum_offset {acc}")
    e(f"  .amdhsa_group_segment_fixed_size 0")
    e(f"  .amdhsa_kernarg_size 104")
    e(f"  .amdhsa_user_sgpr_count 2")
    e(f"  .amdhsa_user_sgpr_kernarg_segment_ptr 1")
    e(f"  .amdhsa_system_sgpr_workgroup_id_x 1")
    e(f".end_amdhsa_kernel")

header = open("cdna_kernels/%s.s.ref" % NAME).read().split("\n")
for l in header:
    if l.startswith("; Override") or l.startswith("; grid=") or l.startswith("; @launch"):
        continue
    if not l.startswith(";"):
        break
    e(l)
e(f"; @launch kernel=k1_kernel grid=(184,1,1) block=(256,1,1) lds=33792")
e(f"; @launch kernel=k2_kernel grid=({64*S},1,1) block=(256,1,1) lds=36864")
e(f"; @launch kernel=k3_kernel grid=(368,1,1) block=(256,1,1) lds=20480")
e(f"; @launch kernel=k4_kernel grid=(16,1,1) block=(256,1,1) lds=0")
e('.amdgcn_target "amdgcn-amd-amdhsa--gfx950"')
e(".text")

kernel_header("k1_kernel")
e("    s_cmp_ge_u32 s2, 184")
e("    s_cbranch_scc1 K1_END")
e("    s_load_dwordx2 s[4:5], s[0:1], 0")
e("    s_load_dwordx2 s[6:7], s[0:1], 24")
e("    s_load_dwordx4 s[24:27], s[0:1], 48")
e("    s_load_dwordx2 s[28:29], s[0:1], 96")
e("    v_and_b32 v1, 63, v0")
e("    v_lshrrev_b32 v2, 6, v0")
e("    s_waitcnt lgkmcnt(0)")
srd(8, 4, 8192)
e("    s_sub_u32 s31, s2, 128")
e("    s_cmp_ge_u32 s2, 128")
e("    s_cselect_b32 s12, s24, s6")
e("    s_cselect_b32 s13, s25, s7")
e("    s_mov_b32 s14, 4194304")
e("    s_cselect_b32 s14, 1835008, s14")
e("    s_mov_b32 s15, 0x00020000")
e("    s_mov_b32 s30, 8192")
e("    s_cselect_b32 s30, 3584, s30")
e("    s_cselect_b32 s31, s31, s2")
e("    s_lshl_b32 s31, s31, 6")
srd(16, 28, 0x10000000)
srd(20, 26, 3584)
e("    v_lshrrev_b32 v3, 4, v1")
e("    v_lshl_add_u32 v3, v2, 7, v3")
e("    v_mul_lo_u32 v3, v3, s30")
e("    v_and_b32 v4, 15, v1")
e("    v_lshl_add_u32 v3, v4, 2, v3")
e("    v_add_u32 v3, s31, v3")
e("    s_lshl_b32 s30, s30, 2")
e("    s_mov_b32 s32, 0")
for i in range(32):
    e(f"    buffer_load_dword v{64+i}, v3, s[12:15], s32 offen")
    if i < 31:
        e(f"    s_add_u32 s32, s32, s30")
e("    v_lshlrev_b32 v5, 11, v2")
e("    v_lshl_add_u32 v5, v1, 4, v5")
e("    buffer_load_dwordx4 v[8:11], v5, s[8:11], 0 offen")
e("    buffer_load_dwordx4 v[12:15], v5, s[8:11], 0 offen offset:1024")
e("    s_waitcnt vmcnt(0)")
e("    v_mul_u32_u24 v6, 272, v1")
e("    v_lshl_add_u32 v6, v2, 3, v6")
for r in range(2):
    src = 8 + 4 * r
    for j in range(4):
        e(f"    v_lshlrev_b32 v{16+2*j}, 16, v{src+j}")
        e(f"    v_and_b32 v{17+2*j}, 0xffff0000, v{src+j}")
    e("    v_add_f32 v24, v16, v17")
    for j in range(2, 8):
        e(f"    v_add_f32 v24, v24, v{16+j}")
    dpp_reduce("v_add_f32", 24, 34)
    e("    s_nop 1")
    e("    v_mov_b32 v25, s34")
    e("    v_mul_f32 v25, 0x3b000000, v25")
    e("    v_mov_b32 v24, 0")
    for j in range(8):
        e(f"    v_sub_f32 v26, v{16+j}, v25")
        e(f"    v_fma_f32 v24, v26, v26, v24")
    dpp_reduce("v_add_f32", 24, 35)
    e("    s_nop 1")
    e("    v_mov_b32 v26, s35")
    e("    v_mul_f32 v26, 0x3b000000, v26")
    bf16r(26)
    bf16r(25)
    e("    v_add_f32 v26, 0x3727c5ac, v26")
    bf16r(26)
    e("    v_sqrt_f32 v26, v26")
    e("    s_nop 0")
    bf16r(26)
    e("    v_rcp_f32 v26, v26")
    for j in range(8):
        e(f"    v_sub_f32 v{16+j}, v{16+j}, v25")
        bf16r(16 + j)
        e(f"    v_mul_f32 v{16+j}, v{16+j}, v26")
        bf16r(16 + j)
        e(f"    ds_write_b32 v6, v{16+j} offset:{j*32 + r*4}")
e("    s_waitcnt lgkmcnt(0)")
e("    s_barrier")
for j in range(16):
    e(f"    v_mov_b32 v{32+j}, 0")
e("    v_lshrrev_b32 v7, 4, v1")
e("    v_lshlrev_b32 v7, 5, v7")
e("    v_mul_u32_u24 v27, 4352, v2")
e("    v_add_u32 v7, v7, v27")
for i in range(32):
    off = i * 128 + (i >> 1) * 16
    e(f"    ds_read_b128 v[16:19], v7 offset:{off}")
    e(f"    ds_read_b128 v[20:23], v7 offset:{off+16}")
    e(f"    v_lshlrev_b32 v24, 16, v{64+i}")
    e(f"    v_and_b32 v25, 0xffff0000, v{64+i}")
    e(f"    s_waitcnt lgkmcnt(0)")
    for b in range(8):
        e(f"    v_fma_f32 v{32+2*b}, v{16+b}, v24, v{32+2*b}")
        e(f"    v_fma_f32 v{33+2*b}, v{16+b}, v25, v{33+2*b}")
e("    s_barrier")
e("    v_lshrrev_b32 v7, 4, v1")
e("    v_lshl_add_u32 v7, v2, 2, v7")
e("    v_lshlrev_b32 v7, 10, v7")
e("    v_lshl_add_u32 v7, v4, 3, v7")
for b in range(8):
    e(f"    ds_write_b64 v7, v[{32+2*b}:{33+2*b}] offset:{b*128}")
e("    s_waitcnt lgkmcnt(0)")
e("    s_barrier")
e("    v_lshlrev_b32 v7, 2, v0")
for sl in range(16):
    e(f"    ds_read_b32 v{16+sl}, v7 offset:{sl*1024}")
e("    s_waitcnt lgkmcnt(0)")
for sl in range(1, 16):
    e(f"    v_add_f32 v16, v16, v{16+sl}")
e("    v_and_b32 v8, 31, v0")
e("    v_lshrrev_b32 v9, 5, v0")
e("    s_cmp_ge_u32 s2, 128")
e("    s_cbranch_scc1 K1_FFN")
e("    v_cvt_pk_bf16_f32 v16, v16, v16")
e("    v_lshlrev_b32 v9, 13, v9")
e("    v_lshl_add_u32 v9, v8, 1, v9")
e("    v_add_u32 v9, s31, v9")
e(f"    buffer_store_short v16, v9, s[16:19], 0 offen")
e("    s_endpgm")
e("K1_FFN:")
e("    v_lshlrev_b32 v10, 1, v8")
e("    v_add_u32 v10, s31, v10")
e("    buffer_load_ushort v11, v10, s[20:23], 0 offen")
bf16r(16)
e("    s_waitcnt vmcnt(0)")
e("    v_lshlrev_b32 v11, 16, v11")
e("    v_add_f32 v16, v16, v11")
bf16r(16)
e("    v_mul_f32 v17, v16, v16")
e("    v_mul_f32 v17, v17, v16")
e("    v_fma_f32 v17, v17, 0x3d372713, v16") if False else None
e("    v_mov_b32 v18, 0x3d372713")
e("    v_fma_f32 v17, v17, v18, v16")
e("    v_mul_f32 v17, 0x40135761, v17")
e("    v_exp_f32 v17, v17")
e("    s_nop 0")
e("    v_add_f32 v17, 1.0, v17")
e("    v_rcp_f32 v17, v17")
e("    s_nop 0")
e("    v_fma_f32 v17, v17, -2.0, 2.0") if False else None
e("    v_mul_f32 v17, -2.0, v17")
e("    v_add_f32 v17, 2.0, v17")
e("    v_mul_f32 v16, 0.5, v16")
e("    v_mul_f32 v16, v16, v17")
bf16r(16)
e("    v_mul_u32_u24 v9, 7168, v9")
e("    v_lshl_add_u32 v9, v8, 2, v9")
e("    s_lshl_b32 s31, s31, 1")
e("    v_add_u32 v9, s31, v9")
e(f"    s_mov_b32 s33, {H_OFF}")
e(f"    buffer_store_dword v16, v9, s[16:19], s33 offen")
e("K1_END:")
e("    s_endpgm")

kernel_header("k2_kernel")
e(f"    s_cmp_ge_u32 s2, {64*S}")
e("    s_cbranch_scc1 K2_END")
e("    s_load_dwordx4 s[4:7], s[0:1], 8")
e("    s_load_dwordx2 s[28:29], s[0:1], 96")
e("    v_and_b32 v1, 63, v0")
e("    v_lshrrev_b32 v2, 6, v0")
e("    v_and_b32 v3, 15, v1")
e("    v_lshrrev_b32 v4, 4, v1")
e(f"    s_lshr_b32 s20, s2, {S.bit_length()-1}")
e(f"    s_and_b32 s21, s2, {S-1}")
e("    s_lshl_b32 s22, s20, 12")
e(f"    s_mul_i32 s23, s21, {L}")
e("    s_add_u32 s22, s22, s23")
e("    s_add_u32 s22, s22, 3072")
e("    s_lshl_b32 s22, s22, 8")
e("    s_waitcnt lgkmcnt(0)")
srd(8, 4, 134217728)
srd(12, 6, 134217728)
srd(16, 28, 0x10000000)
e("    v_lshl_add_u32 v5, v2, 5, v3")
e("    v_lshlrev_b32 v5, 8, v5")
e("    v_lshl_add_u32 v5, v4, 6, v5")
e("    s_add_u32 s23, s22, 4096")
for t in range(2):
    for j in range(4):
        e(f"    buffer_load_dwordx4 v[{16+16*t+4*j}:{19+16*t+4*j}], v5, s[8:11], s{22+t} offen offset:{j*16} nt")
e("    s_lshl_b32 s24, s20, 10")
e("    v_lshlrev_b32 v6, 8, v3")
e("    v_lshl_add_u32 v6, v4, 6, v6")
e("    v_cmp_gt_u32 vcc, 4, v3")
e("    v_mov_b32 v7, 0x7ffffff0")
e("    s_nop 1")
e("    v_cndmask_b32 v6, v7, v6, vcc")
for j in range(4):
    e(f"    buffer_load_dwordx4 v[{80+4*j}:{83+4*j}], v6, s[16:19], s24 offen offset:{j*16}")
e("    v_lshl_add_u32 v7, v2, 5, v4")
e("    v_lshlrev_b32 v7, 8, v7")
e("    v_lshl_add_u32 v7, v3, 4, v7")
for i in range(8):
    e(f"    buffer_load_dwordx4 v[{48+4*i}:{51+4*i}], v7, s[12:15], s{22+(i>>2)} offen offset:{(i&3)*1024} nt")
for j in range(8):
    e(f"    v_mov_b32 v{96+j}, 0")
e("    s_waitcnt vmcnt(8)")
for t in range(2):
    for j in range(4):
        e(f"    v_mfma_f32_16x16x32_bf16 v[{96+4*t}:{99+4*t}], v[{80+4*j}:{83+4*j}], v[{16+16*t+4*j}:{19+16*t+4*j}], v[{96+4*t}:{99+4*t}]")
e("    s_nop 7")
e("    s_nop 1")
for r in range(8):
    bf16r(96 + r)
    e(f"    v_mul_f32 v{96+r}, 0x3db504f3, v{96+r}")
    bf16r(96 + r)
e("    v_lshl_add_u32 v5, v2, 5, v1")
e("    v_lshlrev_b32 v5, 2, v5")
e("    v_cmp_gt_u32 vcc, 16, v1")
e("    s_and_saveexec_b64 s[26:27], vcc")
for t in range(2):
    for h in range(4):
        e(f"    ds_write_b32 v5, v{96+4*t+h} offset:{h*512 + t*64}")
e("    s_mov_b64 exec, s[26:27]")
e("    s_waitcnt lgkmcnt(0)")
e("    s_barrier")
e("    v_lshlrev_b32 v5, 9, v2")
e("    v_lshl_add_u32 v5, v1, 3, v5")
e("    ds_read_b64 v[8:9], v5")
e("    s_waitcnt lgkmcnt(0)")
e("    v_max_f32 v10, v8, v9")
dpp_reduce("v_max_f32", 10, 30)
e("    s_nop 1")
e("    v_subrev_f32 v8, s30, v8")
e("    v_subrev_f32 v9, s30, v9")
e("    v_mul_f32 v8, 0x3fb8aa3b, v8")
e("    v_mul_f32 v9, 0x3fb8aa3b, v9")
e("    v_exp_f32 v8, v8")
e("    v_exp_f32 v9, v9")
e("    s_nop 0")
e("    v_add_f32 v10, v8, v9")
dpp_reduce("v_add_f32", 10, 31)
e("    v_lshlrev_b32 v5, 5, v1")
e("    v_lshl_add_u32 v5, v2, 2, v5")
e("    ds_write_b32 v5, v8 offset:2048")
e("    ds_write_b32 v5, v9 offset:2064")
e("    v_mov_b32 v10, s30")
e("    v_mov_b32 v11, s31")
e("    s_lshl_b32 s25, s2, 5")
e(f"    s_add_u32 s25, s25, {ML_OFF}")
e("    v_lshlrev_b32 v12, 3, v2")
e("    v_cmp_eq_u32 vcc, 0, v1")
e("    s_and_saveexec_b64 s[26:27], vcc")
e("    buffer_store_dwordx2 v[10:11], v12, s[16:19], s25 offen")
e("    s_mov_b64 exec, s[26:27]")
e("    s_waitcnt lgkmcnt(0)")
e("    s_barrier")
for j in range(32):
    e(f"    v_mov_b32 v{16+j}, 0")
e("    v_lshl_add_u32 v5, v2, 5, v4")
e("    v_lshlrev_b32 v5, 4, v5")
e("    s_waitcnt vmcnt(1)")
for i in range(8):
    e(f"    ds_read_b128 v[8:11], v5 offset:{2048 + i*64}")
    for j in range(4):
        e(f"    v_lshlrev_b32 v{80+2*j}, 16, v{48+4*i+j}")
        e(f"    v_and_b32 v{81+2*j}, 0xffff0000, v{48+4*i+j}")
    e("    s_waitcnt lgkmcnt(0)")
    for h in range(4):
        for d in range(8):
            e(f"    v_fma_f32 v{16+8*h+d}, v{8+h}, v{80+d}, v{16+8*h+d}")
e("    v_lshl_add_u32 v5, v2, 2, v4")
e("    v_lshlrev_b32 v5, 11, v5")
e("    v_lshl_add_u32 v5, v3, 5, v5")
for h in range(4):
    e(f"    ds_write_b128 v5, v[{16+8*h}:{19+8*h}] offset:{4096 + h*512}")
    e(f"    ds_write_b128 v5, v[{20+8*h}:{23+8*h}] offset:{4096 + h*512 + 16}")
e("    s_waitcnt lgkmcnt(0)")
e("    s_barrier")
e("    v_lshlrev_b32 v5, 3, v0")
for sl in range(16):
    e(f"    ds_read_b64 v[{16+2*sl}:{17+2*sl}], v5 offset:{4096 + sl*2048}")
e("    s_waitcnt lgkmcnt(0)")
for sl in range(1, 16):
    e(f"    v_add_f32 v16, v16, v{16+2*sl}")
    e(f"    v_add_f32 v17, v17, v{17+2*sl}")
e("    s_lshl_b32 s25, s2, 11")
e(f"    s_add_u32 s25, s25, {OP_OFF}")
e("    buffer_store_dwordx2 v[16:17], v5, s[16:19], s25 offen")
e("K2_END:")
e("    s_endpgm")

kernel_header("k3_kernel")
e("    s_cmp_ge_u32 s2, 368")
e("    s_cbranch_scc1 K3_END")
e("    s_load_dwordx2 s[4:5], s[0:1], 32")
e("    s_load_dwordx2 s[6:7], s[0:1], 64")
e("    s_load_dwordx2 s[28:29], s[0:1], 96")
e("    v_and_b32 v1, 63, v0")
e("    v_lshrrev_b32 v2, 6, v0")
e("    s_lshr_b32 s20, s2, 3")
e("    s_and_b32 s21, s2, 7")
e("    s_waitcnt lgkmcnt(0)")
e("    s_cmp_ge_u32 s20, 32")
e("    s_cselect_b32 s12, s6, s4")
e("    s_cselect_b32 s13, s7, s5")
e("    s_mov_b32 s14, 4194304")
e("    s_cselect_b32 s14, 1835008, s14")
e("    s_mov_b32 s15, 0x00020000")
e("    s_and_b32 s22, s20, 31")
e("    s_lshl_b32 s22, s22, 17")
e("    s_lshl_b32 s23, s21, 7")
e("    s_add_u32 s22, s22, s23")
srd(16, 28, 0x10000000)
e("    v_lshrrev_b32 v3, 5, v1")
e("    v_lshl_add_u32 v3, v2, 5, v3")
e("    v_lshlrev_b32 v3, 10, v3")
e("    v_and_b32 v4, 31, v1")
e("    v_lshl_add_u32 v3, v4, 2, v3")
for i in range(16):
    e(f"    buffer_load_dword v{64+i}, v3, s[12:15], s22 offen offset:{(i&1)*2048}")
    if i & 1:
        e("    s_add_u32 s22, s22, 4096")
e("    s_cmp_ge_u32 s20, 32")
e("    s_cbranch_scc1 K3_FFN")
e("    v_lshrrev_b32 v5, 5, v0")
e("    v_and_b32 v6, 31, v0")
e("    s_lshr_b32 s24, s20, 2")
e("    s_and_b32 s25, s20, 3")
e("    v_lshlrev_b32 v7, 3, v5")
e("    v_add_u32 v7, s24, v7")
e(f"    v_lshlrev_b32 v7, {S.bit_length()-1+2}, v7")
e("    v_add_u32 v7, s25, v7")
e("    v_lshlrev_b32 v8, 3, v7")
e("    v_lshlrev_b32 v9, 9, v7")
e("    v_lshl_add_u32 v9, v6, 4, v9")
e(f"    s_mov_b32 s26, {ML_OFF}")
e(f"    s_mov_b32 s27, {OP_OFF}")
for s in range(S):
    e(f"    buffer_load_dwordx2 v[{16+2*s}:{17+2*s}], v8, s[16:19], s26 offen offset:{s*32}")
for s in range(S):
    e(f"    buffer_load_dwordx4 v[{32+4*s}:{35+4*s}], v9, s[16:19], s27 offen offset:{(s&1)*2048}")
    if s & 1:
        e("    s_add_u32 s27, s27, 4096")
e(f"    s_waitcnt vmcnt({S})")
e("    v_mov_b32 v10, v16")
for s in range(1, S):
    e(f"    v_max_f32 v10, v10, v{16+2*s}")
e("    v_mov_b32 v11, 0")
for s in range(S):
    e(f"    v_sub_f32 v{16+2*s}, v{16+2*s}, v10")
    e(f"    v_mul_f32 v{16+2*s}, 0x3fb8aa3b, v{16+2*s}")
    e(f"    v_exp_f32 v{16+2*s}, v{16+2*s}")
    e(f"    s_nop 0")
    e(f"    v_fma_f32 v11, v{16+2*s}, v{17+2*s}, v11")
e("    v_rcp_f32 v11, v11")
e("    s_waitcnt vmcnt(0)")
for d in range(4):
    e(f"    v_mul_f32 v{12+d}, v16, v{32+d}")
for s in range(1, S):
    for d in range(4):
        e(f"    v_fma_f32 v{12+d}, v{16+2*s}, v{32+4*s+d}, v{12+d}")
for d in range(4):
    e(f"    v_mul_f32 v{12+d}, v{12+d}, v11")
    bf16r(12 + d)
e("    s_branch K3_WR")
e("K3_FFN:")
e("    v_lshrrev_b32 v5, 5, v0")
e("    v_and_b32 v6, 31, v0")
e("    v_mul_u32_u24 v9, 7168, v5")
e("    v_lshl_add_u32 v9, v6, 4, v9")
e("    s_sub_u32 s24, s20, 32")
e("    s_lshl_b32 s24, s24, 9")
e(f"    s_add_u32 s24, s24, {H_OFF}")
e("    buffer_load_dwordx4 v[12:15], v9, s[16:19], s24 offen")
e("    s_waitcnt vmcnt(0)")
e("K3_WR:")
e("    v_lshlrev_b32 v7, 7, v6")
e("    v_lshl_add_u32 v7, v5, 2, v7")
for d in range(4):
    e(f"    ds_write_b32 v7, v{12+d} offset:{d*32}")
e("    s_waitcnt lgkmcnt(0)")
e("    s_barrier")
for j in range(16):
    e(f"    v_mov_b32 v{32+j}, 0")
e("    v_lshrrev_b32 v7, 5, v1")
e("    v_lshl_add_u32 v7, v2, 5, v7")
e("    v_lshlrev_b32 v7, 5, v7")
for i in range(16):
    e(f"    ds_read_b128 v[16:19], v7 offset:{i*64}")
    e(f"    ds_read_b128 v[20:23], v7 offset:{i*64+16}")
    e(f"    v_lshlrev_b32 v24, 16, v{64+i}")
    e(f"    v_and_b32 v25, 0xffff0000, v{64+i}")
    e(f"    s_waitcnt lgkmcnt(0)")
    for b in range(8):
        e(f"    v_fma_f32 v{32+2*b}, v{16+b}, v24, v{32+2*b}")
        e(f"    v_fma_f32 v{33+2*b}, v{16+b}, v25, v{33+2*b}")
e("    v_lshrrev_b32 v7, 5, v1")
e("    v_lshl_add_u32 v7, v2, 1, v7")
e("    v_lshlrev_b32 v7, 11, v7")
e("    v_lshl_add_u32 v7, v4, 3, v7")
for b in range(8):
    e(f"    ds_write_b64 v7, v[{32+2*b}:{33+2*b}] offset:{4096 + b*256}")
e("    s_waitcnt lgkmcnt(0)")
e("    s_barrier")
e("    v_lshlrev_b32 v7, 3, v0")
for sl in range(8):
    e(f"    ds_read_b64 v[{16+2*sl}:{17+2*sl}], v7 offset:{4096 + sl*2048}")
e("    s_waitcnt lgkmcnt(0)")
for sl in range(1, 8):
    e(f"    v_add_f32 v16, v16, v{16+2*sl}")
    e(f"    v_add_f32 v17, v17, v{17+2*sl}")
e("    v_lshrrev_b32 v5, 5, v0")
e("    v_lshlrev_b32 v5, 11, v5")
e("    v_and_b32 v6, 31, v0")
e("    v_lshl_add_u32 v5, v6, 3, v5")
e("    s_lshl_b32 s24, s20, 14")
e("    s_lshl_b32 s25, s21, 8")
e("    s_add_u32 s24, s24, s25")
e(f"    s_add_u32 s24, s24, {PART_OFF}")
e("    buffer_store_dwordx2 v[16:17], v5, s[16:19], s24 offen")
e("K3_END:")
e("    s_endpgm")

kernel_header("k4_kernel")
e("    s_cmp_ge_u32 s2, 16")
e("    s_cbranch_scc1 K4_END")
e("    s_load_dwordx2 s[4:5], s[0:1], 0")
e("    s_load_dwordx4 s[24:27], s[0:1], 72")
e("    s_load_dwordx2 s[28:29], s[0:1], 96")
e("    s_lshl_b32 s3, s2, 8")
e("    v_add_u32 v1, s3, v0")
e("    v_lshlrev_b32 v2, 2, v1")
e("    s_waitcnt lgkmcnt(0)")
srd(8, 4, 8192)
srd(12, 24, 1024)
srd(16, 28, 0x10000000)
srd(20, 26, 8192)
e(f"    s_mov_b32 s30, {PART_OFF}")
for c in range(46):
    e(f"    buffer_load_dword v{16+c}, v2, s[16:19], s30 offen")
    if c < 45:
        e(f"    s_add_u32 s30, s30, 16384")
e("    v_lshlrev_b32 v3, 1, v1")
e("    v_and_b32 v4, 1023, v3")
e("    buffer_load_ushort v5, v3, s[8:11], 0 offen")
e("    buffer_load_ushort v6, v4, s[12:15], 0 offen")
e("    s_waitcnt vmcnt(0)")
for c in range(1, 32):
    e(f"    v_add_f32 v16, v16, v{16+c}")
for c in range(33, 46):
    e(f"    v_add_f32 v48, v48, v{16+c}")
bf16r(16)
bf16r(48)
e("    v_lshlrev_b32 v5, 16, v5")
e("    v_lshlrev_b32 v6, 16, v6")
e("    v_add_f32 v48, v48, v6")
bf16r(48)
e("    v_add_f32 v16, v16, v5")
bf16r(16)
e("    v_add_f32 v16, v16, v48")
e("    v_cvt_pk_bf16_f32 v16, v16, v16")
e("    buffer_store_short v16, v3, s[20:23], 0 offen")
e("K4_END:")
e("    s_endpgm")

e('.section .rodata,"a"')
for n, v in (("k1_kernel", 96), ("k2_kernel", 104), ("k3_kernel", 80), ("k4_kernel", 64)):
    e(".p2align 6")
    kd(n, v)

open("cdna_kernels/%s.s" % NAME, "w").write("\n".join(x for x in out if x is not None) + "\n")
```

```python
import sys

NAME = "parallel_sum__sliding_block_cached__dense_activation_gelu__decode"
S = 8
L = 1024 // S

Q_OFF = 0
H_OFF = 0x10000
ML_OFF = 0x20000
OP_OFF = 0x40000
PART_OFF = 0x200000

out = []
def e(s=""):
    out.append(s)

def srd(dst, ptr, nbytes):
    e(f"    s_mov_b32 s{dst}, s{ptr}")
    e(f"    s_mov_b32 s{dst+1}, s{ptr+1}")
    e(f"    s_mov_b32 s{dst+2}, {nbytes}")
    e(f"    s_mov_b32 s{dst+3}, 0x00020000")

def dpp_reduce(op, v, sdst):
    e(f"    s_nop 1")
    for m in ("row_shr:1 row_mask:0xf", "row_shr:2 row_mask:0xf", "row_shr:4 row_mask:0xf", "row_shr:8 row_mask:0xf",
              "row_bcast:15 row_mask:0xa", "row_bcast:31 row_mask:0xc"):
        e(f"    {op}_dpp v{v}, v{v}, v{v} {m} bank_mask:0xf")
        e(f"    s_nop 1")
    e(f"    v_readlane_b32 s{sdst}, v{v}, 63")

def bf16r(v, tmp=None):
    e(f"    v_cvt_pk_bf16_f32 v{v}, v{v}, v{v}")
    e(f"    v_lshlrev_b32 v{v}, 16, v{v}")

def kernel_header(name):
    e(f".globl {name}")
    e(f".p2align 8")
    e(f".type {name},@function")
    e(f"{name}:")

def kd(name, vgpr, lds=0):
    acc = (vgpr + 3) // 4 * 4
    e(f".amdhsa_kernel {name}")
    e(f"  .amdhsa_next_free_vgpr {vgpr}")
    e(f"  .amdhsa_next_free_sgpr 64")
    e(f"  .amdhsa_accum_offset {acc}")
    e(f"  .amdhsa_group_segment_fixed_size 0")
    e(f"  .amdhsa_kernarg_size 104")
    e(f"  .amdhsa_user_sgpr_count 2")
    e(f"  .amdhsa_user_sgpr_kernarg_segment_ptr 1")
    e(f"  .amdhsa_system_sgpr_workgroup_id_x 1")
    e(f".end_amdhsa_kernel")

header = open("cdna_kernels/%s.s.ref" % NAME).read().split("\n")
for l in header:
    if l.startswith("; Override") or l.startswith("; grid=") or l.startswith("; @launch"):
        continue
    if not l.startswith(";"):
        break
    e(l)
e(f"; @launch kernel=k1_kernel grid=(696,1,1) block=(256,1,1) lds=33792")
e(f"; @launch kernel=k2_kernel grid=({64*S},1,1) block=(256,1,1) lds=36864")
e(f"; @launch kernel=k3_kernel grid=(368,1,1) block=(256,1,1) lds=20480")
e(f"; @launch kernel=k4_kernel grid=(16,1,1) block=(256,1,1) lds=0")
e('.amdgcn_target "amdgcn-amd-amdhsa--gfx950"')
e(".text")

kernel_header("k1_kernel")
e("    s_cmp_ge_u32 s2, 696")
e("    s_cbranch_scc1 K1_END")
e("    s_cmp_ge_u32 s2, 184")
e("    s_cbranch_scc1 K1_PF")
e("    s_load_dwordx2 s[4:5], s[0:1], 0")
e("    s_load_dwordx2 s[6:7], s[0:1], 24")
e("    s_load_dwordx4 s[24:27], s[0:1], 48")
e("    s_load_dwordx2 s[28:29], s[0:1], 96")
e("    v_and_b32 v1, 63, v0")
e("    v_lshrrev_b32 v2, 6, v0")
e("    s_waitcnt lgkmcnt(0)")
srd(8, 4, 8192)
e("    s_sub_u32 s31, s2, 128")
e("    s_cmp_ge_u32 s2, 128")
e("    s_cselect_b32 s12, s24, s6")
e("    s_cselect_b32 s13, s25, s7")
e("    s_mov_b32 s14, 4194304")
e("    s_cselect_b32 s14, 1835008, s14")
e("    s_mov_b32 s15, 0x00020000")
e("    s_mov_b32 s30, 8192")
e("    s_cselect_b32 s30, 3584, s30")
e("    s_cselect_b32 s31, s31, s2")
e("    s_lshl_b32 s31, s31, 6")
srd(16, 28, 0x10000000)
srd(20, 26, 3584)
e("    v_lshrrev_b32 v3, 4, v1")
e("    v_lshl_add_u32 v3, v2, 7, v3")
e("    v_mul_lo_u32 v3, v3, s30")
e("    v_and_b32 v4, 15, v1")
e("    v_lshl_add_u32 v3, v4, 2, v3")
e("    v_add_u32 v3, s31, v3")
e("    s_lshl_b32 s30, s30, 2")
e("    s_mov_b32 s32, 0")
for i in range(32):
    e(f"    buffer_load_dword v{64+i}, v3, s[12:15], s32 offen")
    if i < 31:
        e(f"    s_add_u32 s32, s32, s30")
e("    v_lshlrev_b32 v5, 11, v2")
e("    v_lshl_add_u32 v5, v1, 4, v5")
e("    buffer_load_dwordx4 v[8:11], v5, s[8:11], 0 offen")
e("    buffer_load_dwordx4 v[12:15], v5, s[8:11], 0 offen offset:1024")
e("    s_waitcnt vmcnt(0)")
e("    v_mul_u32_u24 v6, 272, v1")
e("    v_lshl_add_u32 v6, v2, 3, v6")
for r in range(2):
    src = 8 + 4 * r
    for j in range(4):
        e(f"    v_lshlrev_b32 v{16+2*j}, 16, v{src+j}")
        e(f"    v_and_b32 v{17+2*j}, 0xffff0000, v{src+j}")
    e("    v_add_f32 v24, v16, v17")
    for j in range(2, 8):
        e(f"    v_add_f32 v24, v24, v{16+j}")
    dpp_reduce("v_add_f32", 24, 34)
    e("    s_nop 1")
    e("    v_mov_b32 v25, s34")
    e("    v_mul_f32 v25, 0x3b000000, v25")
    e("    v_mov_b32 v24, 0")
    for j in range(8):
        e(f"    v_sub_f32 v26, v{16+j}, v25")
        e(f"    v_fma_f32 v24, v26, v26, v24")
    dpp_reduce("v_add_f32", 24, 35)
    e("    s_nop 1")
    e("    v_mov_b32 v26, s35")
    e("    v_mul_f32 v26, 0x3b000000, v26")
    bf16r(26)
    bf16r(25)
    e("    v_add_f32 v26, 0x3727c5ac, v26")
    bf16r(26)
    e("    v_sqrt_f32 v26, v26")
    e("    s_nop 0")
    bf16r(26)
    e("    v_rcp_f32 v26, v26")
    for j in range(8):
        e(f"    v_sub_f32 v{16+j}, v{16+j}, v25")
        bf16r(16 + j)
        e(f"    v_mul_f32 v{16+j}, v{16+j}, v26")
        bf16r(16 + j)
        e(f"    ds_write_b32 v6, v{16+j} offset:{j*32 + r*4}")
e("    s_waitcnt lgkmcnt(0)")
e("    s_barrier")
for j in range(16):
    e(f"    v_mov_b32 v{32+j}, 0")
e("    v_lshrrev_b32 v7, 4, v1")
e("    v_lshlrev_b32 v7, 5, v7")
e("    v_mul_u32_u24 v27, 4352, v2")
e("    v_add_u32 v7, v7, v27")
for i in range(32):
    off = i * 128 + (i >> 1) * 16
    e(f"    ds_read_b128 v[16:19], v7 offset:{off}")
    e(f"    ds_read_b128 v[20:23], v7 offset:{off+16}")
    e(f"    v_lshlrev_b32 v24, 16, v{64+i}")
    e(f"    v_and_b32 v25, 0xffff0000, v{64+i}")
    e(f"    s_waitcnt lgkmcnt(0)")
    for b in range(8):
        e(f"    v_fma_f32 v{32+2*b}, v{16+b}, v24, v{32+2*b}")
        e(f"    v_fma_f32 v{33+2*b}, v{16+b}, v25, v{33+2*b}")
e("    s_barrier")
e("    v_lshrrev_b32 v7, 4, v1")
e("    v_lshl_add_u32 v7, v2, 2, v7")
e("    v_lshlrev_b32 v7, 10, v7")
e("    v_lshl_add_u32 v7, v4, 3, v7")
for b in range(8):
    e(f"    ds_write_b64 v7, v[{32+2*b}:{33+2*b}] offset:{b*128}")
e("    s_waitcnt lgkmcnt(0)")
e("    s_barrier")
e("    v_lshlrev_b32 v7, 2, v0")
for sl in range(16):
    e(f"    ds_read_b32 v{16+sl}, v7 offset:{sl*1024}")
e("    s_waitcnt lgkmcnt(0)")
for sl in range(1, 16):
    e(f"    v_add_f32 v16, v16, v{16+sl}")
e("    v_and_b32 v8, 31, v0")
e("    v_lshrrev_b32 v9, 5, v0")
e("    s_cmp_ge_u32 s2, 128")
e("    s_cbranch_scc1 K1_FFN")
e("    v_cvt_pk_bf16_f32 v16, v16, v16")
e("    v_lshlrev_b32 v9, 13, v9")
e("    v_lshl_add_u32 v9, v8, 1, v9")
e("    v_add_u32 v9, s31, v9")
e(f"    buffer_store_short v16, v9, s[16:19], 0 offen")
e("    s_endpgm")
e("K1_FFN:")
e("    v_lshlrev_b32 v10, 1, v8")
e("    v_add_u32 v10, s31, v10")
e("    buffer_load_ushort v11, v10, s[20:23], 0 offen")
bf16r(16)
e("    s_waitcnt vmcnt(0)")
e("    v_lshlrev_b32 v11, 16, v11")
e("    v_add_f32 v16, v16, v11")
bf16r(16)
e("    v_mul_f32 v17, v16, v16")
e("    v_mul_f32 v17, v17, v16")
e("    v_fma_f32 v17, v17, 0x3d372713, v16") if False else None
e("    v_mov_b32 v18, 0x3d372713")
e("    v_fma_f32 v17, v17, v18, v16")
e("    v_mul_f32 v17, 0x40135761, v17")
e("    v_exp_f32 v17, v17")
e("    s_nop 0")
e("    v_add_f32 v17, 1.0, v17")
e("    v_rcp_f32 v17, v17")
e("    s_nop 0")
e("    v_fma_f32 v17, v17, -2.0, 2.0") if False else None
e("    v_mul_f32 v17, -2.0, v17")
e("    v_add_f32 v17, 2.0, v17")
e("    v_mul_f32 v16, 0.5, v16")
e("    v_mul_f32 v16, v16, v17")
bf16r(16)
e("    v_mul_u32_u24 v9, 7168, v9")
e("    v_lshl_add_u32 v9, v8, 2, v9")
e("    s_lshl_b32 s31, s31, 1")
e("    v_add_u32 v9, s31, v9")
e(f"    s_mov_b32 s33, {H_OFF}")
e(f"    buffer_store_dword v16, v9, s[16:19], s33 offen")
e("    s_endpgm")
e("K1_PF:")
e("    s_load_dwordx4 s[4:7], s[0:1], 8")
e("    s_sub_u32 s3, s2, 184")
e("    s_lshr_b32 s20, s3, 3")
e("    s_and_b32 s21, s3, 7")
e("    s_lshl_b32 s22, s20, 12")
e("    s_lshl_b32 s23, s21, 7")
e("    s_add_u32 s22, s22, s23")
e("    s_add_u32 s22, s22, 3072")
e("    s_lshl_b32 s22, s22, 8")
e("    v_lshlrev_b32 v1, 4, v0")
e("    s_waitcnt lgkmcnt(0)")
srd(8, 4, 134217728)
srd(12, 6, 134217728)
for i in range(8):
    e(f"    buffer_load_dwordx4 v[{8+4*i}:{11+4*i}], v1, s[8:11], s22 offen")
    e(f"    buffer_load_dwordx4 v[{40+4*i}:{43+4*i}], v1, s[12:15], s22 offen")
    e("    s_add_u32 s22, s22, 4096")
e("    s_waitcnt vmcnt(0)")
e("K1_END:")
e("    s_endpgm")

kernel_header("k2_kernel")
e(f"    s_cmp_ge_u32 s2, {64*S}")
e("    s_cbranch_scc1 K2_END")
e("    s_load_dwordx4 s[4:7], s[0:1], 8")
e("    s_load_dwordx2 s[28:29], s[0:1], 96")
e("    v_and_b32 v1, 63, v0")
e("    v_lshrrev_b32 v2, 6, v0")
e("    v_and_b32 v3, 15, v1")
e("    v_lshrrev_b32 v4, 4, v1")
e(f"    s_lshr_b32 s20, s2, {S.bit_length()-1}")
e(f"    s_and_b32 s21, s2, {S-1}")
e("    s_lshl_b32 s22, s20, 12")
e(f"    s_mul_i32 s23, s21, {L}")
e("    s_add_u32 s22, s22, s23")
e("    s_add_u32 s22, s22, 3072")
e("    s_lshl_b32 s22, s22, 8")
e("    s_waitcnt lgkmcnt(0)")
srd(8, 4, 134217728)
srd(12, 6, 134217728)
srd(16, 28, 0x10000000)
e("    v_lshl_add_u32 v5, v2, 5, v3")
e("    v_lshlrev_b32 v5, 8, v5")
e("    v_lshl_add_u32 v5, v4, 6, v5")
e("    s_add_u32 s23, s22, 4096")
for t in range(2):
    for j in range(4):
        e(f"    buffer_load_dwordx4 v[{16+16*t+4*j}:{19+16*t+4*j}], v5, s[8:11], s{22+t} offen offset:{j*16}")
e("    s_lshl_b32 s24, s20, 10")
e("    v_lshlrev_b32 v6, 8, v3")
e("    v_lshl_add_u32 v6, v4, 6, v6")
e("    v_cmp_gt_u32 vcc, 4, v3")
e("    v_mov_b32 v7, 0x7ffffff0")
e("    s_nop 1")
e("    v_cndmask_b32 v6, v7, v6, vcc")
for j in range(4):
    e(f"    buffer_load_dwordx4 v[{80+4*j}:{83+4*j}], v6, s[16:19], s24 offen offset:{j*16}")
e("    v_lshl_add_u32 v7, v2, 5, v4")
e("    v_lshlrev_b32 v7, 8, v7")
e("    v_lshl_add_u32 v7, v3, 4, v7")
for i in range(8):
    e(f"    buffer_load_dwordx4 v[{48+4*i}:{51+4*i}], v7, s[12:15], s{22+(i>>2)} offen offset:{(i&3)*1024}")
for j in range(8):
    e(f"    v_mov_b32 v{96+j}, 0")
e("    s_waitcnt vmcnt(8)")
for t in range(2):
    for j in range(4):
        e(f"    v_mfma_f32_16x16x32_bf16 v[{96+4*t}:{99+4*t}], v[{80+4*j}:{83+4*j}], v[{16+16*t+4*j}:{19+16*t+4*j}], v[{96+4*t}:{99+4*t}]")
e("    s_nop 7")
e("    s_nop 1")
for r in range(8):
    bf16r(96 + r)
    e(f"    v_mul_f32 v{96+r}, 0x3db504f3, v{96+r}")
    bf16r(96 + r)
e("    v_lshl_add_u32 v5, v2, 5, v1")
e("    v_lshlrev_b32 v5, 2, v5")
e("    v_cmp_gt_u32 vcc, 16, v1")
e("    s_and_saveexec_b64 s[26:27], vcc")
for t in range(2):
    for h in range(4):
        e(f"    ds_write_b32 v5, v{96+4*t+h} offset:{h*512 + t*64}")
e("    s_mov_b64 exec, s[26:27]")
e("    s_waitcnt lgkmcnt(0)")
e("    s_barrier")
e("    v_lshlrev_b32 v5, 9, v2")
e("    v_lshl_add_u32 v5, v1, 3, v5")
e("    ds_read_b64 v[8:9], v5")
e("    s_waitcnt lgkmcnt(0)")
e("    v_max_f32 v10, v8, v9")
dpp_reduce("v_max_f32", 10, 30)
e("    s_nop 1")
e("    v_subrev_f32 v8, s30, v8")
e("    v_subrev_f32 v9, s30, v9")
e("    v_mul_f32 v8, 0x3fb8aa3b, v8")
e("    v_mul_f32 v9, 0x3fb8aa3b, v9")
e("    v_exp_f32 v8, v8")
e("    v_exp_f32 v9, v9")
e("    s_nop 0")
e("    v_add_f32 v10, v8, v9")
dpp_reduce("v_add_f32", 10, 31)
e("    v_lshlrev_b32 v5, 5, v1")
e("    v_lshl_add_u32 v5, v2, 2, v5")
e("    ds_write_b32 v5, v8 offset:2048")
e("    ds_write_b32 v5, v9 offset:2064")
e("    v_mov_b32 v10, s30")
e("    v_mov_b32 v11, s31")
e("    s_lshl_b32 s25, s2, 5")
e(f"    s_add_u32 s25, s25, {ML_OFF}")
e("    v_lshlrev_b32 v12, 3, v2")
e("    v_cmp_eq_u32 vcc, 0, v1")
e("    s_and_saveexec_b64 s[26:27], vcc")
e("    buffer_store_dwordx2 v[10:11], v12, s[16:19], s25 offen")
e("    s_mov_b64 exec, s[26:27]")
e("    s_waitcnt lgkmcnt(0)")
e("    s_barrier")
for j in range(32):
    e(f"    v_mov_b32 v{16+j}, 0")
e("    v_lshl_add_u32 v5, v2, 5, v4")
e("    v_lshlrev_b32 v5, 4, v5")
e("    s_waitcnt vmcnt(1)")
for i in range(8):
    e(f"    ds_read_b128 v[8:11], v5 offset:{2048 + i*64}")
    for j in range(4):
        e(f"    v_lshlrev_b32 v{80+2*j}, 16, v{48+4*i+j}")
        e(f"    v_and_b32 v{81+2*j}, 0xffff0000, v{48+4*i+j}")
    e("    s_waitcnt lgkmcnt(0)")
    for h in range(4):
        for d in range(8):
            e(f"    v_fma_f32 v{16+8*h+d}, v{8+h}, v{80+d}, v{16+8*h+d}")
e("    v_lshl_add_u32 v5, v2, 2, v4")
e("    v_lshlrev_b32 v5, 11, v5")
e("    v_lshl_add_u32 v5, v3, 5, v5")
for h in range(4):
    e(f"    ds_write_b128 v5, v[{16+8*h}:{19+8*h}] offset:{4096 + h*512}")
    e(f"    ds_write_b128 v5, v[{20+8*h}:{23+8*h}] offset:{4096 + h*512 + 16}")
e("    s_waitcnt lgkmcnt(0)")
e("    s_barrier")
e("    v_lshlrev_b32 v5, 3, v0")
for sl in range(16):
    e(f"    ds_read_b64 v[{16+2*sl}:{17+2*sl}], v5 offset:{4096 + sl*2048}")
e("    s_waitcnt lgkmcnt(0)")
for sl in range(1, 16):
    e(f"    v_add_f32 v16, v16, v{16+2*sl}")
    e(f"    v_add_f32 v17, v17, v{17+2*sl}")
e("    s_lshl_b32 s25, s2, 11")
e(f"    s_add_u32 s25, s25, {OP_OFF}")
e("    buffer_store_dwordx2 v[16:17], v5, s[16:19], s25 offen")
e("K2_END:")
e("    s_endpgm")

kernel_header("k3_kernel")
e("    s_cmp_ge_u32 s2, 368")
e("    s_cbranch_scc1 K3_END")
e("    s_load_dwordx2 s[4:5], s[0:1], 32")
e("    s_load_dwordx2 s[6:7], s[0:1], 64")
e("    s_load_dwordx2 s[28:29], s[0:1], 96")
e("    v_and_b32 v1, 63, v0")
e("    v_lshrrev_b32 v2, 6, v0")
e("    s_lshr_b32 s20, s2, 3")
e("    s_and_b32 s21, s2, 7")
e("    s_waitcnt lgkmcnt(0)")
e("    s_cmp_ge_u32 s20, 32")
e("    s_cselect_b32 s12, s6, s4")
e("    s_cselect_b32 s13, s7, s5")
e("    s_mov_b32 s14, 4194304")
e("    s_cselect_b32 s14, 1835008, s14")
e("    s_mov_b32 s15, 0x00020000")
e("    s_and_b32 s22, s20, 31")
e("    s_lshl_b32 s22, s22, 17")
e("    s_lshl_b32 s23, s21, 7")
e("    s_add_u32 s22, s22, s23")
srd(16, 28, 0x10000000)
e("    v_lshrrev_b32 v3, 5, v1")
e("    v_lshl_add_u32 v3, v2, 5, v3")
e("    v_lshlrev_b32 v3, 10, v3")
e("    v_and_b32 v4, 31, v1")
e("    v_lshl_add_u32 v3, v4, 2, v3")
for i in range(16):
    e(f"    buffer_load_dword v{64+i}, v3, s[12:15], s22 offen offset:{(i&1)*2048}")
    if i & 1:
        e("    s_add_u32 s22, s22, 4096")
e("    s_cmp_ge_u32 s20, 32")
e("    s_cbranch_scc1 K3_FFN")
e("    v_lshrrev_b32 v5, 5, v0")
e("    v_and_b32 v6, 31, v0")
e("    s_lshr_b32 s24, s20, 2")
e("    s_and_b32 s25, s20, 3")
e("    v_lshlrev_b32 v7, 3, v5")
e("    v_add_u32 v7, s24, v7")
e(f"    v_lshlrev_b32 v7, {S.bit_length()-1+2}, v7")
e("    v_add_u32 v7, s25, v7")
e("    v_lshlrev_b32 v8, 3, v7")
e("    v_lshlrev_b32 v9, 9, v7")
e("    v_lshl_add_u32 v9, v6, 4, v9")
e(f"    s_mov_b32 s26, {ML_OFF}")
e(f"    s_mov_b32 s27, {OP_OFF}")
for s in range(S):
    e(f"    buffer_load_dwordx2 v[{16+2*s}:{17+2*s}], v8, s[16:19], s26 offen offset:{s*32}")
for s in range(S):
    e(f"    buffer_load_dwordx4 v[{32+4*s}:{35+4*s}], v9, s[16:19], s27 offen offset:{(s&1)*2048}")
    if s & 1:
        e("    s_add_u32 s27, s27, 4096")
e(f"    s_waitcnt vmcnt({S})")
e("    v_mov_b32 v10, v16")
for s in range(1, S):
    e(f"    v_max_f32 v10, v10, v{16+2*s}")
e("    v_mov_b32 v11, 0")
for s in range(S):
    e(f"    v_sub_f32 v{16+2*s}, v{16+2*s}, v10")
    e(f"    v_mul_f32 v{16+2*s}, 0x3fb8aa3b, v{16+2*s}")
    e(f"    v_exp_f32 v{16+2*s}, v{16+2*s}")
    e(f"    s_nop 0")
    e(f"    v_fma_f32 v11, v{16+2*s}, v{17+2*s}, v11")
e("    v_rcp_f32 v11, v11")
e("    s_waitcnt vmcnt(0)")
for d in range(4):
    e(f"    v_mul_f32 v{12+d}, v16, v{32+d}")
for s in range(1, S):
    for d in range(4):
        e(f"    v_fma_f32 v{12+d}, v{16+2*s}, v{32+4*s+d}, v{12+d}")
for d in range(4):
    e(f"    v_mul_f32 v{12+d}, v{12+d}, v11")
    bf16r(12 + d)
e("    s_branch K3_WR")
e("K3_FFN:")
e("    v_lshrrev_b32 v5, 5, v0")
e("    v_and_b32 v6, 31, v0")
e("    v_mul_u32_u24 v9, 7168, v5")
e("    v_lshl_add_u32 v9, v6, 4, v9")
e("    s_sub_u32 s24, s20, 32")
e("    s_lshl_b32 s24, s24, 9")
e(f"    s_add_u32 s24, s24, {H_OFF}")
e("    buffer_load_dwordx4 v[12:15], v9, s[16:19], s24 offen")
e("    s_waitcnt vmcnt(0)")
e("K3_WR:")
e("    v_lshlrev_b32 v7, 7, v6")
e("    v_lshl_add_u32 v7, v5, 2, v7")
for d in range(4):
    e(f"    ds_write_b32 v7, v{12+d} offset:{d*32}")
e("    s_waitcnt lgkmcnt(0)")
e("    s_barrier")
for j in range(16):
    e(f"    v_mov_b32 v{32+j}, 0")
e("    v_lshrrev_b32 v7, 5, v1")
e("    v_lshl_add_u32 v7, v2, 5, v7")
e("    v_lshlrev_b32 v7, 5, v7")
for i in range(16):
    e(f"    ds_read_b128 v[16:19], v7 offset:{i*64}")
    e(f"    ds_read_b128 v[20:23], v7 offset:{i*64+16}")
    e(f"    v_lshlrev_b32 v24, 16, v{64+i}")
    e(f"    v_and_b32 v25, 0xffff0000, v{64+i}")
    e(f"    s_waitcnt lgkmcnt(0)")
    for b in range(8):
        e(f"    v_fma_f32 v{32+2*b}, v{16+b}, v24, v{32+2*b}")
        e(f"    v_fma_f32 v{33+2*b}, v{16+b}, v25, v{33+2*b}")
e("    v_lshrrev_b32 v7, 5, v1")
e("    v_lshl_add_u32 v7, v2, 1, v7")
e("    v_lshlrev_b32 v7, 11, v7")
e("    v_lshl_add_u32 v7, v4, 3, v7")
for b in range(8):
    e(f"    ds_write_b64 v7, v[{32+2*b}:{33+2*b}] offset:{4096 + b*256}")
e("    s_waitcnt lgkmcnt(0)")
e("    s_barrier")
e("    v_lshlrev_b32 v7, 3, v0")
for sl in range(8):
    e(f"    ds_read_b64 v[{16+2*sl}:{17+2*sl}], v7 offset:{4096 + sl*2048}")
e("    s_waitcnt lgkmcnt(0)")
for sl in range(1, 8):
    e(f"    v_add_f32 v16, v16, v{16+2*sl}")
    e(f"    v_add_f32 v17, v17, v{17+2*sl}")
e("    v_lshrrev_b32 v5, 5, v0")
e("    v_lshlrev_b32 v5, 11, v5")
e("    v_and_b32 v6, 31, v0")
e("    v_lshl_add_u32 v5, v6, 3, v5")
e("    s_lshl_b32 s24, s20, 14")
e("    s_lshl_b32 s25, s21, 8")
e("    s_add_u32 s24, s24, s25")
e(f"    s_add_u32 s24, s24, {PART_OFF}")
e("    buffer_store_dwordx2 v[16:17], v5, s[16:19], s24 offen")
e("K3_END:")
e("    s_endpgm")

kernel_header("k4_kernel")
e("    s_cmp_ge_u32 s2, 16")
e("    s_cbranch_scc1 K4_END")
e("    s_load_dwordx2 s[4:5], s[0:1], 0")
e("    s_load_dwordx4 s[24:27], s[0:1], 72")
e("    s_load_dwordx2 s[28:29], s[0:1], 96")
e("    s_lshl_b32 s3, s2, 8")
e("    v_add_u32 v1, s3, v0")
e("    v_lshlrev_b32 v2, 2, v1")
e("    s_waitcnt lgkmcnt(0)")
srd(8, 4, 8192)
srd(12, 24, 1024)
srd(16, 28, 0x10000000)
srd(20, 26, 8192)
e(f"    s_mov_b32 s30, {PART_OFF}")
for c in range(46):
    e(f"    buffer_load_dword v{16+c}, v2, s[16:19], s30 offen")
    if c < 45:
        e(f"    s_add_u32 s30, s30, 16384")
e("    v_lshlrev_b32 v3, 1, v1")
e("    v_and_b32 v4, 1023, v3")
e("    buffer_load_ushort v5, v3, s[8:11], 0 offen")
e("    buffer_load_ushort v6, v4, s[12:15], 0 offen")
e("    s_waitcnt vmcnt(0)")
for c in range(1, 32):
    e(f"    v_add_f32 v16, v16, v{16+c}")
for c in range(33, 46):
    e(f"    v_add_f32 v48, v48, v{16+c}")
bf16r(16)
bf16r(48)
e("    v_lshlrev_b32 v5, 16, v5")
e("    v_lshlrev_b32 v6, 16, v6")
e("    v_add_f32 v48, v48, v6")
bf16r(48)
e("    v_add_f32 v16, v16, v5")
bf16r(16)
e("    v_add_f32 v16, v16, v48")
e("    v_cvt_pk_bf16_f32 v16, v16, v16")
e("    buffer_store_short v16, v3, s[20:23], 0 offen")
e("K4_END:")
e("    s_endpgm")

e('.section .rodata,"a"')
for n, v in (("k1_kernel", 96), ("k2_kernel", 104), ("k3_kernel", 80), ("k4_kernel", 64)):
    e(".p2align 6")
    kd(n, v)

open("cdna_kernels/%s.s" % NAME, "w").write("\n".join(x for x in out if x is not None) + "\n")
```
